```python
import torch

def _softmax(x, axis=-1):
    return torch.softmax(x, dim=axis)
def _gelu(x):
    return torch.nn.functional.gelu(x, approximate="tanh")
def _silu(x):
    return torch.nn.functional.silu(x)
def _sigmoid(x):
    return torch.sigmoid(x)
def _layernorm(x, axis=-1, eps=1e-5):
    m = x.mean(dim=axis, keepdim=True)
    v = x.var(dim=axis, keepdim=True, unbiased=False)
    return (x - m) / torch.sqrt(v + eps)
def _scatter_add(tgt, idx, src, axis=0):
    return tgt.clone().index_add_(axis, idx, src)
def _segment_sum(src, seg, n):
    out = torch.zeros((n,) + src.shape[1:], dtype=src.dtype)
    return out.index_add_(0, seg, src)
def _pad(x, pw):
    flat = tuple(v for pair in reversed(pw) for v in pair)
    return torch.nn.functional.pad(x, flat)

kernel_name = 'interleave_layers__linear_attn_block__mha_block__prompt'

def setup_inputs():

    _w = (lambda a: (lambda t: t.to(torch.bfloat16) if t.is_floating_point() else t)(torch.as_tensor(a)))
    def _A_setup():
        B, S, D = 1, 2048, 576
        return {
            "x": _w((lambda *s: torch.randn(*s, dtype=torch.bfloat16) * 0.05)(B, S, D)),
            "wqkv": _w((lambda *s: torch.randn(*s, dtype=torch.bfloat16) * 0.05)(D, 3 * D)),
            "wo": _w((lambda *s: torch.randn(*s, dtype=torch.bfloat16) * 0.05)(D, D)),
        }
    _A_in = _A_setup()

    def _B_setup():
        B, S, D, H = 1, 2048, 576, 32
        return {
            "x": _w((lambda *s: torch.randn(*s, dtype=torch.bfloat16) * 0.05)(B, S, D)),
            "wqkv": _w((lambda *s: torch.randn(*s, dtype=torch.bfloat16) * 0.1)(D, 3 * D)),
            "wo": _w((lambda *s: torch.randn(*s, dtype=torch.bfloat16) * 0.05)(D, D)),
        }
    _B_in = _B_setup()

    return {
        "A_x": _A_in["x"],
        "A_wqkv": _A_in["wqkv"],
        "A_wo": _A_in["wo"],
        "B_x": _B_in["x"],
        "B_wqkv": _B_in["wqkv"],
        "B_wo": _B_in["wo"],
    }

def reference(A_x, A_wqkv, A_wo, B_x, B_wqkv, B_wo):
    def _A_ref(x, wqkv, wo):
        B, S, D = x.shape
        H = 32; Dh = D // H
        qkv = (lambda x, *d: x.permute(*d))((x @ wqkv).reshape(B, S, 3, H, Dh), 2, 0, 3, 1, 4)
        q, k, v = qkv[0], qkv[1], qkv[2]
        phi = lambda t: torch.where(t > 0, t + 1, torch.exp(t)) + 1e-6
        pq, pk = phi(q), phi(k)
        kv = torch.einsum("bhsd,bhse->bhde", pk, v)
        z = torch.einsum("bhsd->bhd", pk)
        num = torch.einsum("bhqd,bhde->bhqe", pq, kv)
        den = torch.einsum("bhqd,bhd->bhq", pq, z)[..., None] + 1e-6
        o = num / den
        return (lambda x, *d: x.permute(*d))(o, 0, 2, 1, 3).reshape(B, S, D) @ wo

    def _B_ref(x, wqkv, wo):
        B, S, D = x.shape
        H = 32
        Dh = D // H
        qkv = (lambda x, *d: x.permute(*d))((x @ wqkv).reshape(B, S, 3, H, Dh), 2, 0, 3, 1, 4)
        q, k, v = qkv[0], qkv[1], qkv[2]
        scores = torch.einsum("bhqd,bhkd->bhqk", q, k) * (Dh ** -0.5)
        p = _softmax(scores, axis=-1)
        o = torch.einsum("bhqk,bhkd->bhqd", p, v)
        return (lambda x, *d: x.permute(*d))(o, 0, 2, 1, 3).reshape(B, S, D) @ wo

    x = A_x
    x = x + _A_ref(_layernorm(x, axis=-1), A_wqkv, A_wo)
    x = x + _B_ref(_layernorm(x, axis=-1), B_wqkv, B_wo)
    x = x + _A_ref(_layernorm(x, axis=-1), A_wqkv, A_wo)
    x = x + _B_ref(_layernorm(x, axis=-1), B_wqkv, B_wo)
    return x
```

```python
import sys

NAME = "interleave_layers__linear_attn_block__mha_block__prompt"

XB = 0x240000
WS_X0 = 0x000000
WS_X1 = 0x240000
WS_PQ = 0x480000
WS_O = 0x6C0000
WS_QM = 0x900000
WS_QR = 0xB00000
WS_KM = 0xB40000
WS_KR = 0xD40000
WS_VT = 0xD80000
WS_KV = 0x1000000
KVL = 32 * 1520
WS_SIZE = 0x1100000

LOG2E = 1.4426950408889634
import struct
def f2u(x):
    return struct.unpack("<I", struct.pack("<f", x))[0]


class Asm:
    def __init__(self):
        self.lines = []
    def __call__(self, s):
        self.lines.append("    " + s)
    def label(self, l):
        self.lines.append(l + ":")
    def c(self, s):
        self.lines.append("    ; " + s)
    def nop(self, n):
        while n > 0:
            k = min(n, 16)
            self("s_nop %d" % (k - 1))
            n -= k
    def text(self):
        return "\n".join(self.lines) + "\n"


def vr(b, n):
    return "v[%d:%d]" % (b, b + n - 1)
def ar(b, n):
    return "a[%d:%d]" % (b, b + n - 1)
def sr(b, n):
    return "s[%d:%d]" % (b, b + n - 1)


def kernel_header(a, name):
    a.lines.append(".text")
    a.lines.append(".globl %s" % name)
    a.lines.append(".p2align 8")
    a.lines.append(".type %s,@function" % name)
    a.label(name)


def kernel_desc(name, vgpr, agpr, sgpr=102):
    acc = (vgpr + 3) // 4 * 4
    nfv = acc + agpr if agpr else vgpr
    return """.section .rodata,"a"
.p2align 6
.amdhsa_kernel %s
  .amdhsa_next_free_vgpr %d
  .amdhsa_next_free_sgpr %d
  .amdhsa_accum_offset %d
  .amdhsa_group_segment_fixed_size 0
  .amdhsa_kernarg_size 72
  .amdhsa_user_sgpr_count 2
  .amdhsa_user_sgpr_kernarg_segment_ptr 1
  .amdhsa_system_sgpr_workgroup_id_x 1
.end_amdhsa_kernel
""" % (name, nfv, sgpr, acc)


def make_srd(a, d, base, off, size):
    if off:
        a("s_add_u32 s%d, s%d, 0x%x" % (d, base, off))
        a("s_addc_u32 s%d, s%d, 0" % (d + 1, base + 1))
    else:
        a("s_mov_b32 s%d, s%d" % (d, base))
        a("s_mov_b32 s%d, s%d" % (d + 1, base + 1))
    a("s_mov_b32 s%d, 0x%x" % (d + 2, size))
    a("s_mov_b32 s%d, 0x00020000" % (d + 3))


def reduce_g(a, x, t):
    a("v_mov_b32 v%d, v%d" % (t, x))
    a.nop(2)
    a("v_permlane32_swap_b32 v%d, v%d" % (x, t))
    a.nop(2)
    a("v_add_f32 v%d, v%d, v%d" % (x, x, t))
    a("v_mov_b32 v%d, v%d" % (t, x))
    a.nop(2)
    a("v_permlane16_swap_b32 v%d, v%d" % (x, t))
    a.nop(2)
    a("v_add_f32 v%d, v%d, v%d" % (x, x, t))


def gen_zero(name):
    a = Asm()
    kernel_header(a, name)
    a("s_cmp_ge_u32 s2, 95")
    a("s_cbranch_scc1 %s_end" % name)
    a("s_load_dwordx2 s[8:9], s[0:1], 64")
    a("s_waitcnt lgkmcnt(0)")
    make_srd(a, 12, 8, WS_KV, 2 * KVL)
    a("s_lshl_b32 s3, s2, 8")
    a("v_add_u32 v1, s3, v0")
    a("v_lshlrev_b32 v1, 2, v1")
    a("v_mov_b32 v2, 0")
    a("buffer_store_dword v2, v1, s[12:15], 0 offen")
    a.label(name + "_end")
    a("s_endpgm")
    return a.text(), kernel_desc(name, 8, 0)


QKV_LDS_W = 0
QKV_LDS_CS = 576 * 256
QKV_LDS_ST = QKV_LDS_CS + 112 * 16
QKV_LDS = QKV_LDS_ST + 4 * 256


def gen_qkv(name, variant, x_from_ws, x_off, w_arg, layer):
    a = Asm()
    kernel_header(a, name)
    END = name + "_end"
    a("s_cmp_ge_u32 s2, 256")
    a("s_cbranch_scc1 %s" % END)
    a("s_load_dwordx2 s[4:5], s[0:1], %d" % (64 if x_from_ws else 0))
    a("s_load_dwordx2 s[6:7], s[0:1], %d" % w_arg)
    a("s_load_dwordx2 s[8:9], s[0:1], 64")
    a("s_and_b32 s10, s2, 7")
    a("s_lshr_b32 s11, s2, 3")
    a("s_lshr_b32 s12, s10, 1")
    a("s_lshl_b32 s12, s12, 2")
    a("s_and_b32 s13, s11, 3")
    a("s_add_u32 s12, s12, s13")
    a("s_and_b32 s13, s10, 1")
    a("s_lshl_b32 s13, s13, 3")
    a("s_lshr_b32 s14, s11, 2")
    a("s_add_u32 s13, s13, s14")
    a("v_lshrrev_b32 v1, 6, v0")
    a("v_and_b32 v2, 63, v0")
    a("v_readfirstlane_b32 s14, v1")
    XA, WST, BF = 16, 160, 208
    CS0, SX0, SQ0 = 236, 243, 245
    T0 = 247
    TRA = 1
    a("v_lshrrev_b32 v%d, 5, v0" % T0)
    a("v_and_b32 v%d, 31, v0" % (T0 + 1))
    a("v_cmp_gt_u32 vcc, 27, v%d" % (T0 + 1))
    a("s_mov_b64 s[30:31], vcc")
    a("v_mul_u32_u24 v9, 3456, v%d" % T0)
    a("v_lshl_add_u32 v9, v%d, 3, v9" % (T0 + 1))
    a("v_mov_b32 v%d, 1080" % (T0 + 2))
    a("v_cmp_le_u32 vcc, 9, v%d" % (T0 + 1))
    a.nop(2)
    a("v_cndmask_b32 v%d, 0, v%d, vcc" % (T0 + 3, T0 + 2))
    a("v_add_u32 v9, v9, v%d" % (T0 + 3))
    a("v_cmp_le_u32 vcc, 18, v%d" % (T0 + 1))
    a.nop(2)
    a("v_cndmask_b32 v%d, 0, v%d, vcc" % (T0 + 3, T0 + 2))
    a("v_add_u32 v9, v9, v%d" % (T0 + 3))
    a("s_mul_i32 s15, s13, 72")
    a("v_add_u32 v9, s15, v9")
    a("v_lshrrev_b32 v%d, 2, v%d" % (T0 + 2, T0 + 1))
    a("v_and_b32 v%d, 3, v%d" % (T0 + 3, T0 + 1))
    a("v_add_u32 v%d, v%d, v%d" % (T0 + 2, T0 + 2, T0))
    a("v_and_b32 v10, 7, v%d" % (T0 + 2))
    a("v_add_u32 v11, 4, v%d" % (T0 + 2))
    a("v_and_b32 v11, 7, v11")
    a("v_lshlrev_b32 v%d, 8, v%d" % (T0 + 4, T0))
    a("v_lshl_add_u32 v%d, v%d, 3, v%d" % (T0 + 4, T0 + 3, T0 + 4))
    a("v_lshl_add_u32 v10, v10, 5, v%d" % (T0 + 4))
    a("v_lshl_add_u32 v11, v11, 5, v%d" % (T0 + 4))
    a("s_lshl_b32 s15, s12, 7")
    a("s_lshl_b32 s28, s14, 5")
    a("s_add_u32 s15, s15, s28")
    a("v_and_b32 v13, 15, v2")
    a("v_lshrrev_b32 v14, 4, v2")
    a("v_add_u32 v12, s15, v13")
    a("v_mul_u32_u24 v12, 1152, v12")
    a("v_lshl_add_u32 v12, v14, 4, v12")
    a("v_lshrrev_b32 v%d, 2, v13" % T0)
    a("v_and_b32 v%d, 3, v13" % (T0 + 1))
    a("v_lshl_add_u32 v%d, v14, 3, v%d" % (T0 + 2, T0))
    a("v_lshlrev_b32 v%d, 8, v%d" % (T0 + 2, T0 + 2))
    a("v_lshl_add_u32 v%d, v%d, 3, v%d" % (T0 + 2, T0 + 1, T0 + 2))
    a("v_and_b32 v%d, 1, v14" % (T0 + 3))
    a("v_lshl_add_u32 v%d, v%d, 2, v%d" % (T0 + 3, T0 + 3, T0))
    a("v_mov_b32 v15, v2")
    for t in range(8):
        a("v_add_u32 v%d, %d, v%d" % (T0 + 4, t, T0 + 3))
        a("v_and_b32 v%d, 7, v%d" % (T0 + 4, T0 + 4))
        a("v_lshl_add_u32 v%d, v%d, 5, v%d" % (TRA + t, T0 + 4, T0 + 2))
    a("s_waitcnt lgkmcnt(0)")
    make_srd(a, 16, 4, x_off if x_from_ws else 0, XB)
    make_srd(a, 20, 6, 0, 576 * 3456)
    make_srd(a, 24, 8, 0, WS_SIZE)
    a("s_mov_b32 s28, 18432")
    a("v_mov_b32 v%d, 0x3f803f80" % (T0))
    ONES = T0
    for i in range(7):
        a("v_mov_b32 v%d, 0" % (CS0 + i))
    for i in range(4):
        a("v_mov_b32 v%d, 0" % (SX0 + i))

    def issue_w(chunk):
        a("s_mov_b64 exec, s[30:31]")
        for p in range(24):
            a("s_mov_b32 s29, %d" % ((chunk * 24 + p) * 27648))
            a("buffer_load_dwordx2 %s, v9, s[20:23], s29 offen" % vr(WST + 2 * p, 2))
        a("s_mov_b64 exec, -1")

    def write_w(chunk):
        a("s_mov_b64 exec, s[30:31]")
        for p in range(24):
            a("ds_write_b64 v%d, %s offset:%d" % (10 + (p & 1), vr(WST + 2 * p, 2), p * 2048))
        a("s_mov_b64 exec, -1")
        if chunk < 2:
            a("v_add_u32 v10, 49152, v10")
            a("v_add_u32 v11, 49152, v11")

    def tr_read(ks, t):
        off = (ks % 8) * 8192
        a("ds_read_b64_tr_b16 %s, v%d offset:%d" % (vr(BF + 4 * t, 2), TRA + t, off))
        a("ds_read_b64_tr_b16 %s, v%d offset:%d" % (vr(BF + 4 * t + 2, 2), TRA + ((t + 4) & 7), off + 1024))

    ntrans = 2 if variant == 'A' else 4

    issue_w(0)
    for mt in range(2):
        for ks in range(18):
            a("buffer_load_dwordx4 %s, v12, s[16:19], %s offen offset:%d" % (
                vr(XA + (mt * 18 + ks) * 4, 4), "s28" if mt else "0", ks * 64))
    for chunk in range(3):
        if chunk == 0:
            a("s_waitcnt vmcnt(36)")
        else:
            a("s_waitcnt vmcnt(0)")
        write_w(chunk)
        a("s_waitcnt lgkmcnt(0)")
        if chunk < 2:
            issue_w(chunk + 1)
        a("s_barrier")
        if chunk == 0:
            a("s_waitcnt vmcnt(24)")
        ks0 = chunk * 6
        for t in range(7):
            tr_read(ks0, t)
        for ks in range(ks0, ks0 + 6):
            last = (ks == ks0 + 5)
            if (ks + 1) % 8 == 0 and not last:
                pass
            for t in range(7):
                a("s_waitcnt lgkmcnt(%d)" % ((6 - t) * 2 if last else 12))
                for mt in range(2):
                    acc = ar((t * 2 + mt) * 4, 4)
                    xa = vr(XA + (mt * 18 + ks) * 4, 4)
                    bf = vr(BF + 4 * t, 4)
                    c = "0" if ks == 0 else acc
                    if t < ntrans:
                        a("v_mfma_f32_16x16x32_bf16 %s, %s, %s, %s" % (acc, bf, xa, c))
                    else:
                        a("v_mfma_f32_16x16x32_bf16 %s, %s, %s, %s" % (acc, xa, bf, c))
                a("s_cmp_lg_u32 s14, %d" % (ks % 4))
                lab = "%s_cs_%d_%d" % (name, ks, t)
                a("s_cbranch_scc1 %s" % lab)
                for j in range(4):
                    a("v_dot2_f32_bf16 v%d, v%d, v%d, v%d" % (CS0 + t, BF + 4 * t + j, ONES, CS0 + t))
                a.label(lab)
                if t < 4:
                    mt = t >> 1
                    for j in range(2):
                        r = XA + (mt * 18 + ks) * 4 + (t & 1) * 2 + j
                        a("v_dot2_f32_bf16 v%d, v%d, v%d, v%d" % (SX0 + mt, r, ONES, SX0 + mt))
                        a("v_dot2_f32_bf16 v%d, v%d, v%d, v%d" % (SQ0 + mt, r, r, SQ0 + mt))
                if not last:
                    if (ks + 1) % 8 == 0:
                        if t == 0:
                            pass
                    tr_read_next = True
                    if (ks + 1) % 8 == 0:
                        if t == 0:
                            for q in range(8):
                                a("v_add_u32 v%d, 0x10000, v%d" % (TRA + q, TRA + q))
                    tr_read(ks + 1, t)
            if last and (ks + 1) % 8 == 0:
                for q in range(8):
                    a("v_add_u32 v%d, 0x10000, v%d" % (TRA + q, TRA + q))

    a.nop(4)
    for t in range(7):
        reduce_g(a, CS0 + t, T0 + 1)
    for i in range(4):
        reduce_g(a, SX0 + i, T0 + 1)
    a("v_lshlrev_b32 v%d, 4, v13" % (T0 + 1))
    a("s_lshl_b32 s29, s14, 2")
    a("s_add_u32 s29, s29, %d" % QKV_LDS_CS)
    a("v_add_u32 v%d, s29, v%d" % (T0 + 1, T0 + 1))
    for t in range(7):
        a("ds_write_b32 v%d, v%d offset:%d" % (T0 + 1, CS0 + t, t * 256))
    AA, BB = SX0, SQ0
    a("s_mov_b32 s33, 0x%x" % f2u(1.0 / 576.0))
    a("s_mov_b32 s34, 0x%x" % f2u(1e-5))
    for mt in range(2):
        a("v_mul_f32 v%d, s33, v%d" % (T0 + 2, SX0 + mt))
        a("v_mul_f32 v%d, s33, v%d" % (T0 + 3, SQ0 + mt))
        a("v_fma_f32 v%d, -v%d, v%d, v%d" % (T0 + 3, T0 + 2, T0 + 2, T0 + 3))
        a("v_max_f32 v%d, 0, v%d" % (T0 + 3, T0 + 3))
        a("v_add_f32 v%d, s34, v%d" % (T0 + 3, T0 + 3))
        a("v_rsq_f32 v%d, v%d" % (AA + mt, T0 + 3))
        a.nop(1)
        a("v_mul_f32 v%d, v%d, v%d" % (BB + mt, T0 + 2, AA + mt))
        a("v_sub_f32 v%d, 0, v%d" % (BB + mt, BB + mt))
    a("s_lshl_b32 s29, s14, 8")
    a("s_add_u32 s29, s29, %d" % QKV_LDS_ST)
    a("v_lshlrev_b32 v%d, 2, v13" % (T0 + 2))
    a("v_add_u32 v%d, s29, v%d" % (T0 + 2, T0 + 2))
    for mt in range(2):
        a("ds_write_b32 v%d, v%d offset:%d" % (T0 + 2, AA + mt, mt * 64))
        a("ds_write_b32 v%d, v%d offset:%d" % (T0 + 2, BB + mt, 128 + mt * 64))
    a("s_waitcnt lgkmcnt(0)")
    a("s_barrier")
    NA, NB = 16, 24
    a("v_lshlrev_b32 v%d, 4, v14" % (T0 + 2))
    a("v_add_u32 v%d, s29, v%d" % (T0 + 2, T0 + 2))
    for mt in range(2):
        a("ds_read_b128 %s, v%d offset:%d" % (vr(NA + 4 * mt, 4), T0 + 2, mt * 64))
        a("ds_read_b128 %s, v%d offset:%d" % (vr(NB + 4 * mt, 4), T0 + 2, 128 + mt * 64))
    CN = 32
    a("v_lshlrev_b32 v%d, 4, v13" % (T0 + 3))
    a("v_add_u32 v%d, %d, v%d" % (T0 + 3, QKV_LDS_CS, T0 + 3))
    for t in range(ntrans, 7):
        a("ds_read_b128 %s, v%d offset:%d" % (vr(CN + 4 * t, 4), T0 + 3, t * 256))
    CT = 64
    a("v_lshlrev_b32 v%d, 6, v14" % (T0 + 4))
    a("v_add_u32 v%d, %d, v%d" % (T0 + 4, QKV_LDS_CS, T0 + 4))
    for t in range(ntrans):
        for r in range(4):
            a("ds_read_b128 %s, v%d offset:%d" % (vr(CT + 16 * t + 4 * r, 4), T0 + 4, t * 256 + r * 16))
    a("s_waitcnt lgkmcnt(0)")
    def sum4(b):
        a("v_add_f32 v%d, v%d, v%d" % (b, b, b + 1))
        a("v_add_f32 v%d, v%d, v%d" % (b + 2, b + 2, b + 3))
        a("v_add_f32 v%d, v%d, v%d" % (b, b, b + 2))
    for t in range(ntrans, 7):
        sum4(CN + 4 * t)
    for t in range(ntrans):
        for r in range(4):
            sum4(CT + 16 * t + 4 * r)

    Y = 128
    PK = 140
    TT = 170
    a("s_mov_b32 s35, 0x%x" % f2u(LOG2E))
    a("s_mov_b32 s36, 0x%x" % f2u(1e-6))

    def compute_y(t):
        for mt in range(2):
            for r in range(4):
                y = Y + mt * 4 + r
                a("v_accvgpr_read_b32 v%d, a%d" % (y, (t * 2 + mt) * 4 + r))
        for mt in range(2):
            for r in range(4):
                y = Y + mt * 4 + r
                if t < ntrans:
                    a("v_mul_f32 v%d, v%d, v%d" % (y, AA + mt, y))
                    a("v_fma_f32 v%d, v%d, v%d, v%d" % (y, BB + mt, CT + 16 * t + 4 * r, y))
                else:
                    a("v_mul_f32 v%d, v%d, v%d" % (y, NA + 4 * mt + r, y))
                    a("v_fma_f32 v%d, v%d, v%d, v%d" % (y, NB + 4 * mt + r, CN + 4 * t, y))

    def phi_all(maskpair=None):
        for i in range(8):
            y = Y + i
            a("v_mul_f32 v%d, s35, v%d" % (TT, y))
            a("v_exp_f32 v%d, v%d" % (TT, TT))
            a("v_add_f32 v%d, 1.0, v%d" % (TT + 1, y))
            a("v_cmp_lt_f32 vcc, 0, v%d" % y)
            a.nop(2)
            a("v_cndmask_b32 v%d, v%d, v%d, vcc" % (TT, TT, TT + 1))
            a("v_add_f32 v%d, s36, v%d" % (TT, TT))
            if maskpair is None:
                a("v_mov_b32 v%d, v%d" % (y, TT))
            else:
                a("v_cndmask_b32 v%d, v%d, v%d, %s" % (y, y, TT, maskpair))

    def pack_rows(dst):
        for i in range(4):
            a("v_cvt_pk_bf16_f32 v%d, v%d, v%d" % (dst + i, Y + 2 * i, Y + 2 * i + 1))

    if variant == 'A':
        a("v_add_u32 v%d, s15, v13" % (TT + 4))
        a("v_mul_u32_u24 v%d, 1152, v%d" % (TT + 4, TT + 4))
        a("v_lshl_add_u32 v%d, v14, 3, v%d" % (TT + 4, TT + 4))
        a("s_mul_i32 s29, s13, 72")
        a("s_add_u32 s29, s29, 0x%x" % WS_PQ)
        a("v_add_u32 v%d, s29, v%d" % (TT + 4, TT + 4))
        for t in range(2):
            compute_y(t)
            phi_all()
            pack_rows(TT + 8)
            a("buffer_store_dwordx2 %s, v%d, s[24:27], 0 offen offset:%d" % (vr(TT + 8, 2), TT + 4, 32 * t))
            a("buffer_store_dwordx2 %s, v%d, s[24:27], s28 offen offset:%d" % (vr(TT + 10, 2), TT + 4, 32 * t))
            a.nop(2)
        compute_y(2)
        phi_all()
        pack_rows(PK + 8)
        a("v_lshl_add_u32 v%d, v14, 2, s15" % (TT + 5))
        a("v_mul_u32_u24 v%d, 1152, v%d" % (TT + 5, TT + 5))
        a("v_lshl_add_u32 v%d, v13, 1, v%d" % (TT + 5, TT + 5))
        a("v_add_u32 v%d, s29, v%d" % (TT + 5, TT + 5))
        a("v_cmp_gt_u32 vcc, 4, v13")
        a("s_mov_b64 exec, vcc")
        for mt in range(2):
            so = "s28" if mt else "0"
            a("buffer_store_short v%d, v%d, s[24:27], %s offen offset:%d" % (PK + 8 + 2 * mt, TT + 5, so, 64))
            a("buffer_store_short_d16_hi v%d, v%d, s[24:27], %s offen offset:%d" % (PK + 8 + 2 * mt, TT + 5, so, 64 + 1152))
            a("buffer_store_short v%d, v%d, s[24:27], %s offen offset:%d" % (PK + 9 + 2 * mt, TT + 5, so, 64 + 2304))
            a("buffer_store_short_d16_hi v%d, v%d, s[24:27], %s offen offset:%d" % (PK + 9 + 2 * mt, TT + 5, so, 64 + 3456))
        a("s_mov_b64 exec, -1")
        compute_y(3)
        phi_all()
        pack_rows(PK + 12)
        compute_y(4)
        a("v_cmp_gt_u32 s[38:39], 8, v13")
        a.nop(2)
        phi_all("s[38:39]")
        pack_rows(PK + 16)
        compute_y(5)
        pack_rows(PK + 20)
        compute_y(6)
        pack_rows(PK + 24)
        a("v_cmp_eq_u32 vcc, 12, v13")
        a.nop(2)
        for i in range(4):
            a("v_cndmask_b32 v%d, v%d, v%d, vcc" % (PK + 24 + i, PK + 24 + i, ONES))
        a.nop(2)
        ZD = 16
        for ti in range(3):
            for tj in range(3):
                a("v_mfma_f32_16x16x32_bf16 %s, %s, %s, 0" % (
                    vr(ZD + (ti * 3 + tj) * 4, 4), vr(PK + 4 * (2 + ti), 4), vr(PK + 4 * (4 + tj), 4)))
        a("v_mul_u32_u24 v%d, 768, v14" % (TT + 4))
        a("v_lshl_add_u32 v%d, v13, 2, v%d" % (TT + 4, TT + 4))
        a("s_mul_i32 s29, s14, 9216")
        a("v_add_u32 v%d, s29, v%d" % (TT + 4, TT + 4))
        a.nop(8)
        for ti in range(3):
            for tj in range(3):
                for r in range(4):
                    a("ds_write_b32 v%d, v%d offset:%d" % (TT + 4, ZD + (ti * 3 + tj) * 4 + r,
                                                          ((16 * ti + r) * 48 + 16 * tj) * 4))
        a("s_waitcnt lgkmcnt(0)")
        a("s_barrier")
        a("s_mul_i32 s29, s13, 3040")
        a("s_add_u32 s29, s29, 0x%x" % (WS_KV + layer * KVL))
        for it in range(3):
            I = TT
            a("v_add_u32 v%d, %d, v0" % (I, 256 * it))
            a("v_cmp_le_u32 vcc, 380, v%d" % I)
            a.nop(2)
            a("v_cndmask_b32 v%d, 0, 1, vcc" % (I + 1))
            a("v_mul_u32_u24 v%d, 380, v%d" % (I + 2, I + 1))
            a("v_sub_u32 v%d, v%d, v%d" % (I + 2, I, I + 2))
            a("v_mul_u32_u24 v%d, 3277, v%d" % (I + 3, I + 2))
            a("v_lshrrev_b32 v%d, 16, v%d" % (I + 3, I + 3))
            a("v_mul_u32_u24 v%d, 20, v%d" % (I + 4, I + 3))
            a("v_sub_u32 v%d, v%d, v%d" % (I + 4, I + 2, I + 4))
            a("v_mul_u32_u24 v%d, 18, v%d" % (I + 5, I + 1))
            a("v_add3_u32 v%d, v%d, v%d, 4" % (I + 6, I + 5, I + 4))
            a("v_add3_u32 v%d, v%d, v%d, 8" % (I + 7, I + 5, I + 3))
            a("v_cmp_eq_u32 vcc, 18, v%d" % (I + 3))
            a.nop(2)
            a("v_cndmask_b32 v%d, v%d, 44, vcc" % (I + 7, I + 7))
            a("v_mul_u32_u24 v%d, 48, v%d" % (I + 6, I + 6))
            a("v_add_lshl_u32 v%d, v%d, v%d, 2" % (I + 6, I + 6, I + 7))
            a("v_cmp_gt_u32 vcc, 760, v%d" % I)
            a("v_cmp_gt_u32 s[38:39], 18, v%d" % (I + 4))
            a("s_and_b64 vcc, vcc, s[38:39]")
            a("s_mov_b64 exec, vcc")
            for w in range(4):
                a("ds_read_b32 v%d, v%d offset:%d" % (I + 8 + w, I + 6, w * 9216))
            a("v_lshlrev_b32 v%d, 2, v%d" % (I, I))
            a("s_waitcnt lgkmcnt(0)")
            sum4(I + 8)
            a("buffer_atomic_add_f32 v%d, v%d, s[24:27], s29 offen" % (I + 8, I))
            a("s_mov_b64 exec, -1")
    else:
        QS = f2u(LOG2E / (18.0 ** 0.5))
        a("s_mov_b32 s37, 0x%x" % QS)
        a("s_lshl_b32 s40, s12, 2")
        a("s_add_u32 s40, s40, s14")
        a("s_lshl_b32 s41, s13, 1")
        for t in range(4):
            compute_y(t)
            if t < 2:
                for i in range(8):
                    a("v_mul_f32 v%d, s37, v%d" % (Y + i, Y + i))
            elif t == 2:
                a("v_cmp_eq_u32 vcc, 0, v14")
                a("v_mov_b32 v%d, s37" % TT)
                a.nop(1)
                a("v_cndmask_b32 v%d, 1.0, v%d, vcc" % (TT, TT))
                for i in range(8):
                    a("v_mul_f32 v%d, v%d, v%d" % (Y + i, TT, Y + i))
            pack_rows(TT + 8)
            for P in range(2):
                F = TT
                a("v_lshl_add_u32 v%d, v14, 2, %d" % (F, 16 * t + 2 * P))
                a("v_cmp_le_u32 vcc, 36, v%d" % F)
                a("v_mov_b32 v%d, 0x%x" % (F + 1, WS_KM))
                a("v_mov_b32 v%d, 0x%x" % (F + 2, WS_KR))
                a("v_mov_b32 v%d, 0x%x" % (F + 3, WS_QM))
                a("v_mov_b32 v%d, 0x%x" % (F + 4, WS_QR))
                a("v_cndmask_b32 v%d, v%d, v%d, vcc" % (F + 1, F + 3, F + 1))
                a("v_cndmask_b32 v%d, v%d, v%d, vcc" % (F + 2, F + 4, F + 2))
                a("v_cndmask_b32 v%d, 0, 36, vcc" % (F + 3))
                a("v_sub_u32 v%d, v%d, v%d" % (F, F, F + 3))
                a("v_cmp_le_u32 vcc, 18, v%d" % F)
                a.nop(2)
                a("v_cndmask_b32 v%d, 0, 1, vcc" % (F + 3))
                a("v_cndmask_b32 v%d, 0, 18, vcc" % (F + 4))
                a("v_sub_u32 v%d, v%d, v%d" % (F, F, F + 4))
                a("v_add_u32 v%d, s41, v%d" % (F + 3, F + 3))
                a("v_lshl_add_u32 v%d, v%d, 16, v%d" % (F + 1, F + 3, F + 1))
                a("s_lshl_b32 s29, s40, 10")
                a("v_add_u32 v%d, s29, v%d" % (F + 1, F + 1))
                a("v_lshrrev_b32 v%d, 3, v%d" % (F + 4, F))
                a("v_lshl_add_u32 v%d, v%d, 9, v%d" % (F + 1, F + 4, F + 1))
                a("v_and_b32 v%d, 7, v%d" % (F + 4, F))
                a("v_lshl_add_u32 v%d, v%d, 1, v%d" % (F + 1, F + 4, F + 1))
                a("v_lshl_add_u32 v%d, v13, 4, v%d" % (F + 1, F + 1))
                a("v_lshl_add_u32 v%d, v%d, 13, v%d" % (F + 2, F + 3, F + 2))
                a("v_add_u32 v%d, s15, v13" % (F + 4))
                a("v_lshl_add_u32 v%d, v%d, 2, v%d" % (F + 2, F + 4, F + 2))
                a("v_cmp_gt_u32 vcc, 16, v%d" % F)
                a("v_mov_b32 v%d, 64" % (F + 5))
                a("v_mov_b32 v%d, 256" % (F + 6))
                a("v_cndmask_b32 v%d, v%d, v%d, vcc" % (F + 1, F + 2, F + 1))
                a("v_cndmask_b32 v%d, v%d, v%d, vcc" % (F + 5, F + 5, F + 6))
                a("v_add_u32 v%d, v%d, v%d" % (F + 2, F + 1, F + 5))
                a("buffer_store_dword v%d, v%d, s[24:27], 0 offen" % (TT + 8 + P, F + 1))
                a("buffer_store_dword v%d, v%d, s[24:27], 0 offen" % (TT + 10 + P, F + 2))
            a.nop(2)
        for t in range(4, 7):
            compute_y(t)
            pack_rows(PK)
            F = TT
            if t == 4:
                a("v_add_u32 v%d, 10, v13" % F)
                a("s_add_u32 s29, s41, 1")
                a("s_lshl_b32 s42, s29, 16")
                a("s_add_u32 s42, s42, 0x%x" % WS_KM)
                a("s_lshl_b32 s43, s40, 10")
                a("s_add_u32 s42, s42, s43")
                a("v_lshrrev_b32 v%d, 3, v%d" % (F + 1, F))
                a("v_lshlrev_b32 v%d, 9, v%d" % (F + 1, F + 1))
                a("v_and_b32 v%d, 7, v%d" % (F + 2, F))
                a("v_lshl_add_u32 v%d, v%d, 1, v%d" % (F + 1, F + 2, F + 1))
                a("v_lshl_add_u32 v%d, v14, 6, v%d" % (F + 1, F + 1))
                a("v_add_u32 v%d, s42, v%d" % (F + 1, F + 1))
                a("s_lshl_b32 s42, s29, 13")
                a("s_add_u32 s42, s42, 0x%x" % WS_KR)
                a("v_lshl_add_u32 v%d, v14, 2, s15" % (F + 2))
                a("v_lshlrev_b32 v%d, 2, v%d" % (F + 2, F + 2))
                a("v_subrev_u32 v%d, 16, v%d" % (F + 3, F))
                a("v_lshl_add_u32 v%d, v%d, 1, v%d" % (F + 2, F + 3, F + 2))
                a("v_add_u32 v%d, s42, v%d" % (F + 2, F + 2))
                a("v_cmp_gt_u32 vcc, 16, v%d" % F)
                a.nop(2)
                a("v_cndmask_b32 v%d, v%d, v%d, vcc" % (F + 1, F + 2, F + 1))
                a("v_cndmask_b32 v%d, 4, 16, vcc" % (F + 3))
                a("v_cmp_gt_u32 vcc, 8, v13")
                a("s_mov_b64 exec, vcc")
                for i in range(8):
                    mt, r = i >> 2, i & 3
                    reg = PK + mt * 2 + (r >> 1)
                    op = "buffer_store_short_d16_hi" if (r & 1) else "buffer_store_short"
                    a("%s v%d, v%d, s[24:27], 0 offen" % (op, reg, F + 1))
                    if i == 3:
                        a("v_lshl_add_u32 v%d, v%d, 3, v%d" % (F + 1, F + 3, F + 1))
                        a("v_lshl_add_u32 v%d, v%d, 2, v%d" % (F + 1, F + 3, F + 1))
                        a("v_add_u32 v%d, v%d, v%d" % (F + 1, F + 3, F + 1))
                    elif i < 7:
                        a("v_add_u32 v%d, v%d, v%d" % (F + 1, F + 3, F + 1))
                a("s_mov_b64 exec, -1")
            a("v_add_u32 v%d, %d, v13" % (F, 16 * t - 72))
            a("v_cmp_le_i32 vcc, 18, v%d" % F)
            a.nop(2)
            a("v_cndmask_b32 v%d, 0, 1, vcc" % (F + 1))
            a("v_cndmask_b32 v%d, 0, 18, vcc" % (F + 2))
            a("v_sub_u32 v%d, v%d, v%d" % (F + 2, F, F + 2))
            if t == 6:
                a("v_cmp_le_u32 vcc, 12, v13")
                a("v_subrev_u32 v%d, 12, v13" % (F + 3))
                a.nop(1)
                a("v_cndmask_b32 v%d, v%d, v%d, vcc" % (F + 1, F + 1, F + 3))
                a("v_cndmask_b32 v%d, v%d, 18, vcc" % (F + 2, F + 2))
                for i in range(4):
                    a("v_cndmask_b32 v%d, v%d, v%d, vcc" % (PK + i, PK + i, ONES))
            a("v_add_u32 v%d, s41, v%d" % (F + 1, F + 1))
            a("s_mov_b32 s29, 77824")
            a("v_mul_lo_u32 v%d, v%d, s29" % (F + 1, F + 1))
            a("v_lshl_add_u32 v%d, v%d, 4, v%d" % (F + 1, F + 2, F + 1))
            a("v_and_b32 v%d, 1, v14" % (F + 3))
            a("v_mul_u32_u24 v%d, 304, v%d" % (F + 3, F + 3))
            a("v_add_u32 v%d, v%d, v%d" % (F + 1, F + 1, F + 3))
            a("v_lshrrev_b32 v%d, 1, v14" % (F + 3))
            a("v_lshl_add_u32 v%d, v%d, 3, v%d" % (F + 1, F + 3, F + 1))
            a("s_mul_i32 s29, s40, 1216")
            a("s_add_u32 s29, s29, 0x%x" % WS_VT)
            if t == 4:
                a("v_cmp_le_u32 vcc, 8, v13")
                a("s_mov_b64 exec, vcc")
            elif t == 6:
                a("v_cmp_gt_u32 vcc, 14, v13")
                a("s_mov_b64 exec, vcc")
            a("buffer_store_dwordx2 %s, v%d, s[24:27], s29 offen" % (vr(PK, 2), F + 1))
            a("buffer_store_dwordx2 %s, v%d, s[24:27], s29 offen offset:608" % (vr(PK + 2, 2), F + 1))
            a("s_mov_b64 exec, -1")
            a.nop(2)
    a.label(END)
    a("s_endpgm")
    return a.text(), kernel_desc(name, 256, 56)


OUT_LDS_RED = 576 * 192
OUT_LDS = OUT_LDS_RED + 2 * 12288


def gen_out(name, variant, xin_from_ws, xin_off, xout_is_out, xout_off, w_arg, layer):
    a = Asm()
    kernel_header(a, name)
    END = name + "_end"
    a("s_cmp_ge_u32 s2, 192")
    a("s_cbranch_scc1 %s" % END)
    a("s_load_dwordx2 s[4:5], s[0:1], %d" % (64 if xin_from_ws else 0))
    a("s_load_dwordx2 s[6:7], s[0:1], %d" % w_arg)
    a("s_load_dwordx2 s[8:9], s[0:1], 64")
    a("s_load_dwordx2 s[10:11], s[0:1], %d" % (48 if xout_is_out else 64))
    a("s_and_b32 s40, s2, 7")
    a("s_lshr_b32 s41, s2, 3")
    a("s_lshl_b32 s12, s40, 2")
    a("s_and_b32 s13, s41, 3")
    a("s_add_u32 s12, s12, s13")
    a("s_lshr_b32 s13, s41, 2")
    a("v_lshrrev_b32 v1, 6, v0")
    a("v_and_b32 v2, 63, v0")
    a("v_readfirstlane_b32 s14, v1")
    a("v_and_b32 v3, 31, v2")
    a("v_lshrrev_b32 v4, 5, v2")
    a("s_and_b32 s15, s14, 1")
    a("s_lshr_b32 s16, s14, 1")
    a("s_lshl_b32 s17, s12, 6")
    a("s_lshl_b32 s18, s15, 5")
    a("s_add_u32 s17, s17, s18")
    a("v_add_u32 v5, s17, v3")
    a("v_mul_u32_u24 v5, 1152, v5")
    for j in range(3):
        a("v_add_u32 v9, %d, v0" % (256 * j))
        a("v_mul_u32_u24 v10, 5462, v9")
        a("v_lshrrev_b32 v10, 16, v10")
        a("v_mul_u32_u24 v11, 12, v10")
        a("v_sub_u32 v11, v9, v11")
        a("v_mul_u32_u24 v10, 1152, v10")
        a("v_lshl_add_u32 v%d, v11, 4, v10" % (6 + j))
    a("s_waitcnt lgkmcnt(0)")
    make_srd(a, 20, 4, xin_off if xin_from_ws else 0, XB)
    make_srd(a, 24, 6, 0, 576 * 1152)
    make_srd(a, 28, 8, 0, WS_SIZE)
    make_srd(a, 32, 10, 0 if xout_is_out else xout_off, XB)
    if variant == 'A':
        make_srd(a, 36, 8, WS_KV + layer * KVL, KVL)
    a("s_mul_i32 s42, s13, 192")
    a("s_lshl_b32 s43, s14, 10")
    for grp in range(9):
        for j in range(3):
            a("s_add_u32 s44, s43, %d" % (grp * 12288 + j * 4096))
            a("s_mov_b32 m0, s44")
            a("s_add_u32 s45, s42, %d" % (grp * 73728))
            a("buffer_load_dwordx4 v%d, s[24:27], s45 offen lds" % (6 + j))
    OF = 16
    XR = 96
    WF = 120
    a("v_lshl_add_u32 v9, v4, 3, v5")
    a("v_add_u32 v9, s42, v9")
    for nt in range(3):
        for q in range(4):
            a("buffer_load_dwordx2 %s, v9, s[20:23], 0 offen offset:%d" % (vr(XR + (nt * 4 + q) * 2, 2), nt * 64 + q * 16))
    a("v_lshrrev_b32 v10, 4, v2")
    a("v_and_b32 v10, 1, v10")
    a("v_and_b32 v11, 15, v2")
    a("v_lshrrev_b32 v12, 2, v11")
    a("v_and_b32 v11, 3, v11")
    a("v_lshlrev_b32 v13, 5, v10")
    a("v_lshl_add_u32 v13, v11, 3, v13")
    a("s_mul_i32 s44, s16, %d" % (288 * 192))
    if variant == 'B':
        a("v_lshl_add_u32 v14, v4, 3, v12")
        a("v_mul_u32_u24 v14, 192, v14")
        a("v_add3_u32 v14, v14, v13, s44")
        KSTR, SEC = 16 * 192, 4 * 192
        a("v_lshl_add_u32 v15, v4, 4, v5")
        a("s_mul_i32 s45, s16, 576")
        a("s_add_u32 s45, s45, 0x%x" % WS_O)
        for ks in range(18):
            a("buffer_load_dwordx4 %s, v15, s[28:31], s45 offen offset:%d" % (vr(OF + ks * 4, 4), ks * 32))
        a("s_waitcnt vmcnt(0)")
    else:
        a("v_lshl_add_u32 v14, v4, 2, v12")
        a("v_mul_u32_u24 v14, 192, v14")
        a("v_add3_u32 v14, v14, v13, s44")
        KSTR, SEC = 18 * 192, 8 * 192
        a("v_lshrrev_b32 v15, 1, v12")
        a("v_lshl_add_u32 v15, v4, 2, v15")
        a("v_mul_u32_u24 v15, 18, v15")
        a("v_and_b32 v10, 1, v12")
        a("v_add3_u32 v15, v15, v10, 16")
        a("v_mul_u32_u24 v15, 192, v15")
        a("v_add3_u32 v15, v15, v13, s44")
        PM, PR = 48, 112
        KRAW, KC, DD = 144, 184, 144
        KRAW = 144
        KC = 184
        DD = 120
        DD = 216
        T = 248
        for i in range(64):
            if i % 4:
                a("v_accvgpr_write_b32 a%d, 0" % (PR + i))
        a("v_lshl_add_u32 v10, v4, 4, v5")
        a("s_mul_i32 s45, s16, 576")
        a("s_add_u32 s45, s45, 0x%x" % WS_PQ)
        a("v_cmp_eq_u32 vcc, 0, v4")
        a("v_mov_b32 v%d, 0x40000000" % T)
        a.nop(1)
        a("v_cndmask_b32 v11, v%d, v5, vcc" % T)
        for hl in range(16):
            a("buffer_load_dwordx4 %s, v10, s[28:31], s45 offen offset:%d" % (ar(PM + hl * 4, 4), hl * 36))
            a("buffer_load_dword a%d, v11, s[28:31], s45 offen offset:%d" % (PR + hl * 4, hl * 36 + 32))
        a("v_mul_u32_u24 v12, 80, v3")
        a("v_lshl_add_u32 v13, v4, 5, v12")
        a("v_cmp_gt_u32 vcc, 19, v3")
        a.nop(2)
        a("v_cndmask_b32 v13, v%d, v13, vcc" % T)
        a("v_add_u32 v12, 64, v12")
        a("v_cmp_eq_u32 s[46:47], 0, v4")
        a("s_and_b64 vcc, vcc, s[46:47]")
        a.nop(2)
        a("v_cndmask_b32 v12, v%d, v12, vcc" % T)
        a("s_mul_i32 s45, s16, %d" % (16 * 1520))
        a("s_mov_b32 s46, 0x%x" % f2u(1e-6))

        def kv_loads(G):
            for i in range(4):
                off = (G * 4 + i) * 1520
                a("s_add_u32 s47, s45, %d" % off)
                a("buffer_load_dwordx4 %s, v13, s[36:39], s47 offen" % vr(KRAW + i * 10, 4))
                a("buffer_load_dwordx4 %s, v13, s[36:39], s47 offen offset:16" % vr(KRAW + i * 10 + 4, 4))
                a("buffer_load_dwordx2 %s, v12, s[36:39], s47 offen" % vr(KRAW + i * 10 + 8, 2))
        RF = OF + 64
        for i in range(4):
            for j in range(1, 4):
                a("v_mov_b32 v%d, 0" % (KC + i * 8 + 4 + j))
        kv_loads(0)
        for G in range(4):
            a("s_waitcnt vmcnt(0)")
            for i in range(4):
                for j in range(5):
                    a("v_cvt_pk_bf16_f32 v%d, v%d, v%d" % (KC + i * 8 + j, KRAW + i * 10 + 2 * j, KRAW + i * 10 + 2 * j + 1))
            if G < 3:
                kv_loads(G + 1)
            else:
                a.nop(2)
            for half in range(2):
                for u in range(2):
                    i = half * 2 + u
                    hl = G * 4 + i
                    d = vr(DD + u * 16, 16)
                    a("v_mfma_f32_32x32x16_bf16 %s, %s, %s, 0" % (d, vr(KC + i * 8, 4), ar(PM + hl * 4, 4)))
                    a("v_mfma_f32_32x32x16_bf16 %s, %s, %s, %s" % (d, vr(KC + i * 8 + 4, 4), ar(PR + hl * 4, 4), d))
                a.nop(16)
                for u in range(2):
                    i = half * 2 + u
                    hl = G * 4 + i
                    D = DD + u * 16
                    a("v_mov_b32 v%d, v%d" % (T, D + 10))
                    a.nop(2)
                    a("v_permlane32_swap_b32 v%d, v%d" % (T, D + 10))
                    a.nop(2)
                    a("v_add_f32 v%d, s46, v%d" % (T, T))
                    a("v_rcp_f32 v%d, v%d" % (T, T))
                    a.nop(1)
                    for r in range(10):
                        a("v_mul_f32 v%d, v%d, v%d" % (D + r, D + r, T))
                    for j in range(4):
                        a("v_cvt_pk_bf16_f32 v%d, v%d, v%d" % (OF + hl * 4 + j, D + 2 * j, D + 2 * j + 1))
                    a("v_cvt_pk_bf16_f32 v%d, v%d, v%d" % (RF + hl, D + 8, D + 9))
                a.nop(2)
        a.nop(2)
        for G8 in range(2):
            for q in range(4):
                a("v_permlane32_swap_b32 v%d, v%d" % (RF + G8 * 8 + q, RF + G8 * 8 + 4 + q))
        a("s_waitcnt vmcnt(0)")
    a("s_barrier")

    steps = []
    if variant == 'B':
        for ks in range(18):
            steps.append((OF + ks * 4, 14, ks * KSTR, SEC))
    else:
        for hl in range(16):
            steps.append((OF + hl * 4, 14, hl * KSTR, SEC))
        for G8 in range(2):
            steps.append((OF + 64 + G8 * 8, 15, G8 * 8 * 18 * 192, 36 * 192))

    def wread(s, nt):
        fr, ad, off, sec = steps[s]
        b = WF + (s & 1) * 12 + nt * 4
        a("ds_read_b64_tr_b16 %s, v%d offset:%d" % (vr(b, 2), ad, off + nt * 64))
        a("ds_read_b64_tr_b16 %s, v%d offset:%d" % (vr(b + 2, 2), ad, off + nt * 64 + sec))
    for s in range(2):
        for nt in range(3):
            wread(s, nt)
    NS = len(steps)
    for s in range(NS):
        for nt in range(3):
            rem = (2 - nt) + (3 if s + 1 < NS else 0) + (nt if s + 2 < NS else 0)
            a("s_waitcnt lgkmcnt(%d)" % (rem * 2))
            acc = ar(nt * 16, 16)
            a("v_mfma_f32_32x32x16_bf16 %s, %s, %s, %s" % (acc, vr(WF + (s & 1) * 12 + nt * 4, 4), vr(steps[s][0], 4), "0" if s == 0 else acc))
            if s + 2 < NS:
                wread(s + 2, nt)
    a.nop(16)
    a("s_mul_i32 s44, s15, 12288")
    a("s_add_u32 s44, s44, %d" % OUT_LDS_RED)
    a("v_lshl_add_u32 v10, v2, 4, s44")
    AC = 16
    for i in range(48):
        a("v_accvgpr_read_b32 v%d, a%d" % (AC + i, i))
    a("s_cmp_eq_u32 s16, 0")
    a("s_cbranch_scc1 %s_k0" % name)
    for q in range(12):
        a("ds_write_b128 v10, %s offset:%d" % (vr(AC + q * 4, 4), q * 1024))
    a("s_waitcnt lgkmcnt(0)")
    a("s_barrier")
    a("s_branch %s" % END)
    a.label(name + "_k0")
    a("s_barrier")
    RD = 144
    for q in range(12):
        a("ds_read_b128 %s, v10 offset:%d" % (vr(RD + q * 4, 4), q * 1024))
    a("s_waitcnt lgkmcnt(0)")
    for q in range(12):
        for j in range(4):
            a("v_add_f32 v%d, v%d, v%d" % (AC + q * 4 + j, AC + q * 4 + j, RD + q * 4 + j))
        x0, x1 = XR + 2 * q, XR + 2 * q + 1
        a("v_lshlrev_b32 v%d, 16, v%d" % (RD, x0))
        a("v_and_b32 v%d, 0xffff0000, v%d" % (RD + 1, x0))
        a("v_lshlrev_b32 v%d, 16, v%d" % (RD + 2, x1))
        a("v_and_b32 v%d, 0xffff0000, v%d" % (RD + 3, x1))
        for j in range(4):
            a("v_add_f32 v%d, v%d, v%d" % (AC + q * 4 + j, AC + q * 4 + j, RD + j))
        a("v_cvt_pk_bf16_f32 v%d, v%d, v%d" % (x0, AC + q * 4, AC + q * 4 + 1))
        a("v_cvt_pk_bf16_f32 v%d, v%d, v%d" % (x1, AC + q * 4 + 2, AC + q * 4 + 3))
        a("buffer_store_dwordx2 %s, v9, s[32:35], 0 offen offset:%d" % (vr(x0, 2), (q >> 2) * 64 + (q & 3) * 16))
    a.label(END)
    a("s_endpgm")
    return a.text(), kernel_desc(name, 256, 176 if variant == 'A' else 48)


AT_KM, AT_KR, AT_VT = 0, 65536, 73728
AT_LDS = AT_VT + 77824


def gen_attn(name):
    a = Asm()
    kernel_header(a, name)
    END = name + "_end"
    a("s_cmp_ge_u32 s2, 256")
    a("s_cbranch_scc1 %s" % END)
    a("s_load_dwordx2 s[8:9], s[0:1], 64")
    a("s_and_b32 s10, s2, 7")
    a("s_lshr_b32 s11, s2, 3")
    a("s_lshl_b32 s12, s10, 2")
    a("s_lshr_b32 s13, s11, 3")
    a("s_add_u32 s12, s12, s13")
    a("s_and_b32 s13, s11, 7")
    a("v_lshrrev_b32 v1, 6, v0")
    a("v_and_b32 v2, 63, v0")
    a("v_readfirstlane_b32 s14, v1")
    a("v_and_b32 v3, 31, v2")
    a("v_lshrrev_b32 v4, 5, v2")
    a("v_lshlrev_b32 v5, 4, v2")
    a("s_waitcnt lgkmcnt(0)")
    make_srd(a, 24, 8, 0, WS_SIZE)
    a("s_lshl_b32 s15, s14, 10")
    a("s_lshl_b32 s16, s12, 16")
    a("s_add_u32 s16, s16, 0x%x" % WS_KM)
    a("s_add_u32 s16, s16, s15")
    a("s_lshl_b32 s17, s12, 13")
    a("s_add_u32 s17, s17, 0x%x" % WS_KR)
    a("s_add_u32 s17, s17, s15")
    a("s_mul_i32 s18, s12, 77824")
    a("s_add_u32 s18, s18, 0x%x" % WS_VT)
    a("s_add_u32 s18, s18, s15")
    def dma(src, srcoff, dst):
        a("s_add_u32 s19, s15, %d" % dst)
        a("s_mov_b32 m0, s19")
        a("s_add_u32 s20, s%d, %d" % (src, srcoff))
        a("buffer_load_dwordx4 v5, s[24:27], s20 offen lds")
    dma(17, 0, AT_KR)
    for j in range(8):
        dma(16, j * 8192, AT_KM + j * 8192)
        dma(18, j * 8192, AT_VT + j * 8192)
    dma(18, 8 * 8192, AT_VT + 8 * 8192)
    a("s_cmp_ge_u32 s14, 4")
    a("s_cbranch_scc1 %s_nodma" % name)
    dma(18, 9 * 8192, AT_VT + 9 * 8192)
    a.label(name + "_nodma")
    Q0, Q1, NM, S0, S1, E, P, O = 8, 12, 16, 32, 48, 64, 80, 88
    KA, KB, VA = 104, 112, 120
    T = 136
    a("s_lshl_b32 s19, s13, 3")
    a("s_add_u32 s19, s19, s14")
    a("s_lshl_b32 s20, s19, 10")
    a("s_lshl_b32 s21, s12, 16")
    a("s_add_u32 s20, s20, s21")
    a("s_add_u32 s20, s20, 0x%x" % WS_QM)
    a("buffer_load_dwordx4 %s, v5, s[24:27], s20 offen" % vr(Q0, 4))
    a("s_lshl_b32 s20, s19, 7")
    a("s_lshl_b32 s21, s12, 13")
    a("s_add_u32 s20, s20, s21")
    a("s_add_u32 s20, s20, 0x%x" % WS_QR)
    a("v_lshlrev_b32 v6, 2, v3")
    a("v_cmp_eq_u32 vcc, 0, v4")
    a("v_mov_b32 v7, 0x40000000")
    a.nop(1)
    a("v_cndmask_b32 v7, v7, v6, vcc")
    a("buffer_load_dword v%d, v7, s[24:27], s20 offen" % Q1)
    for j in range(1, 4):
        a("v_mov_b32 v%d, 0" % (Q1 + j))
        a("v_mov_b32 v%d, 0" % (KB + j))
        a("v_mov_b32 v%d, 0" % (KB + 4 + j))
    for r in range(16):
        a("v_mov_b32 v%d, 0" % (O + r))
    a("v_add_u32 v6, %d, v6" % AT_KR)
    a("v_min_u32 v7, 18, v3")
    a("v_lshlrev_b32 v7, 4, v7")
    a("v_mul_u32_u24 v1, 304, v4")
    a("v_add3_u32 v7, v7, v1, 0")
    a("v_add_u32 v7, %d, v7" % AT_VT)
    a("s_waitcnt vmcnt(0)")
    a("s_barrier")

    def kread(buf, rel):
        a("ds_read_b128 %s, v5 offset:%d" % (vr(KA + buf * 4, 4), rel * 1024))
        a("ds_read_b32 v%d, v6 offset:%d" % (KB + buf * 4, rel * 128))
    def vread(buf, rel):
        a("ds_read_b128 %s, v7 offset:%d" % (vr(VA + buf * 8, 4), rel * 1216))
        a("ds_read_b128 %s, v7 offset:%d" % (vr(VA + buf * 8 + 4, 4), rel * 1216 + 608))
    def qk(S, buf, c):
        a("v_mfma_f32_32x32x16_bf16 %s, %s, %s, %s" % (vr(S, 16), vr(KA + buf * 4, 4), vr(Q0, 4), c))
        a("v_mfma_f32_32x32x16_bf16 %s, %s, %s, %s" % (vr(S, 16), vr(KB + buf * 4, 4), vr(Q1, 4), vr(S, 16)))
    def rowmax(S, t):
        a("v_max3_f32 v%d, v%d, v%d, v%d" % (t, S, S + 1, S + 2))
        for j in range(3, 15, 2):
            a("v_max3_f32 v%d, v%d, v%d, v%d" % (t, t, S + j, S + j + 1))
        a("v_max_f32 v%d, v%d, v%d" % (t, t, S + 15))
        a("v_mov_b32 v%d, v%d" % (t + 1, t))
        a.nop(2)
        a("v_permlane32_swap_b32 v%d, v%d" % (t, t + 1))
        a.nop(2)
        a("v_max_f32 v%d, v%d, v%d" % (t, t, t + 1))
    def expcvt(S):
        for j in range(16):
            a("v_exp_f32 v%d, v%d" % (E + j, S + j))
            if j >= 3 and j % 2 == 1:
                q = (j - 3) // 2
                a("v_cvt_pk_bf16_f32 v%d, v%d, v%d" % (P + q, E + 2 * q, E + 2 * q + 1))
        a.nop(1)
        a("v_cvt_pk_bf16_f32 v%d, v%d, v%d" % (P + 7, E + 14, E + 15))

    kread(0, 0)
    kread(1, 1)
    vread(0, 0)
    a("s_waitcnt lgkmcnt(4)")
    qk(S0, 0, "0")
    a.nop(16)
    rowmax(S0, T)
    a("v_add_f32 v%d, 0x40e00000, v%d" % (T, T))
    for r in range(16):
        a("v_sub_f32 v%d, 0, v%d" % (NM + r, T))
        a("v_sub_f32 v%d, v%d, v%d" % (S0 + r, S0 + r, T))
    a("s_mov_b32 s22, 0")
    a("s_mov_b32 s23, 0x40004000")
    a.nop(2)
    LOOP = name + "_loop"
    a.label(LOOP)
    for u in range(2):
        Sc, Sn = (S0, S1) if u == 0 else (S1, S0)
        a("s_waitcnt lgkmcnt(2)")
        qk(Sn, 1 - u, vr(NM, 16))
        kread(u, u + 2)
        vread(1 - u, u + 1)
        expcvt(Sc)
        a("v_or3_b32 v%d, v%d, v%d, v%d" % (T, P, P + 1, P + 2))
        a("v_or3_b32 v%d, v%d, v%d, v%d" % (T, T, P + 3, P + 4))
        a("v_or3_b32 v%d, v%d, v%d, v%d" % (T, T, P + 5, P + 6))
        a("v_or_b32 v%d, v%d, v%d" % (T, T, P + 7))
        a("v_and_b32 v%d, s23, v%d" % (T, T))
        a("v_cmp_ne_u32 vcc, 0, v%d" % T)
        a("s_cbranch_vccnz %s_rare%d" % (name, u))
        a.label("%s_back%d" % (name, u))
        a("s_waitcnt lgkmcnt(4)")
        a("v_mfma_f32_32x32x16_bf16 %s, %s, %s, %s" % (vr(O, 16), vr(VA + u * 8, 4), vr(P, 4), vr(O, 16)))
        a("v_mfma_f32_32x32x16_bf16 %s, %s, %s, %s" % (vr(O, 16), vr(VA + u * 8 + 4, 4), vr(P + 4, 4), vr(O, 16)))
    a("v_add_u32 v5, 2048, v5")
    a("v_add_u32 v6, 256, v6")
    a("v_add_u32 v7, 2432, v7")
    a("s_add_u32 s22, s22, 2")
    a("s_cmp_lt_u32 s22, 64")
    a("s_cbranch_scc1 %s" % LOOP)
    a("s_waitcnt lgkmcnt(0)")
    a.nop(16)
    a("v_mov_b32 v%d, v%d" % (T, O + 10))
    a.nop(2)
    a("v_permlane32_swap_b32 v%d, v%d" % (T, O + 10))
    a.nop(2)
    a("v_rcp_f32 v%d, v%d" % (T, T))
    a.nop(1)
    for r in range(10):
        a("v_mul_f32 v%d, v%d, v%d" % (O + r, O + r, T))
    for j in range(5):
        a("v_cvt_pk_bf16_f32 v%d, v%d, v%d" % (P + j, O + 2 * j, O + 2 * j + 1))
    a("s_lshl_b32 s20, s19, 5")
    a("v_add_u32 v1, s20, v3")
    a("v_mul_u32_u24 v1, 1152, v1")
    a("v_lshl_add_u32 v1, v4, 3, v1")
    a("s_mul_i32 s20, s12, 36")
    a("s_add_u32 s20, s20, 0x%x" % WS_O)
    a("buffer_store_dwordx2 %s, v1, s[24:27], s20 offen" % vr(P, 2))
    a("buffer_store_dwordx2 %s, v1, s[24:27], s20 offen offset:16" % vr(P + 2, 2))
    a("v_cmp_eq_u32 vcc, 0, v4")
    a("s_mov_b64 exec, vcc")
    a("buffer_store_dword v%d, v1, s[24:27], s20 offen offset:32" % (P + 4))
    a("s_endpgm")
    for u in range(2):
        Sc, Sn = (S0, S1) if u == 0 else (S1, S0)
        a.label("%s_rare%d" % (name, u))
        rowmax(Sc, T)
        a("v_add_f32 v%d, 0x40e00000, v%d" % (T, T))
        a("v_max_f32 v%d, 0, v%d" % (T, T))
        a("v_sub_f32 v%d, 0, v%d" % (T + 1, T))
        a("v_exp_f32 v%d, v%d" % (T + 1, T + 1))
        for r in range(16):
            a("v_sub_f32 v%d, v%d, v%d" % (NM + r, NM + r, T))
            a("v_sub_f32 v%d, v%d, v%d" % (Sc + r, Sc + r, T))
            a("v_sub_f32 v%d, v%d, v%d" % (Sn + r, Sn + r, T))
        for r in range(16):
            a("v_mul_f32 v%d, v%d, v%d" % (O + r, O + r, T + 1))
        expcvt(Sc)
        a.nop(2)
        a("s_branch %s_back%d" % (name, u))
    a.label(END)
    a("s_endpgm")
    return a.text(), kernel_desc(name, 140, 0)


def build(launches, kernels):
    hdr = open("cdna_kernels/%s.s.ref" % NAME).read().split("\n")
    out = []
    for l in hdr:
        if l.startswith("; @launch"):
            break
        out.append(l)
    for (k, g, b, lds) in launches:
        out.append("; @launch kernel=%s grid=(%d,1,1) block=(%d,1,1) lds=%d" % (k, g, b, lds))
    out.append('.amdgcn_target "amdgcn-amd-amdhsa--gfx950"')
    s = "\n".join(out) + "\n"
    for t, d in kernels:
        s += t
    for t, d in kernels:
        s += d
    return s


def main():
    kernels = []
    launches = []
    def add(k, g, b, lds):
        kernels.append(k); launches.append((k[0].split(":")[0].split()[-1], g, b, lds))
    kernels.append(gen_zero("zero_kernel")); launches.append(("zero_kernel", 95, 256, 0))
    kernels.append(gen_qkv("qkva1_kernel", 'A', False, 0, 8, 0)); launches.append(("qkva1_kernel", 256, 256, QKV_LDS))
    kernels.append(gen_out("outa1_kernel", 'A', False, 0, False, WS_X0, 16, 0)); launches.append(("outa1_kernel", 192, 256, OUT_LDS))
    kernels.append(gen_qkv("qkvb1_kernel", 'B', True, WS_X0, 32, 0)); launches.append(("qkvb1_kernel", 256, 256, QKV_LDS))
    kernels.append(gen_attn("attn_kernel")); launches.append(("attn_kernel", 256, 512, AT_LDS))
    kernels.append(gen_out("outb1_kernel", 'B', True, WS_X0, False, WS_X1, 40, 0)); launches.append(("outb1_kernel", 192, 256, OUT_LDS))
    kernels.append(gen_qkv("qkva2_kernel", 'A', True, WS_X1, 8, 1)); launches.append(("qkva2_kernel", 256, 256, QKV_LDS))
    kernels.append(gen_out("outa2_kernel", 'A', True, WS_X1, False, WS_X0, 16, 1)); launches.append(("outa2_kernel", 192, 256, OUT_LDS))
    kernels.append(gen_qkv("qkvb2_kernel", 'B', True, WS_X0, 32, 0)); launches.append(("qkvb2_kernel", 256, 256, QKV_LDS))
    launches.append(("attn_kernel", 256, 512, AT_LDS))
    kernels.append(gen_out("outb2_kernel", 'B', True, WS_X0, True, 0, 40, 0)); launches.append(("outb2_kernel", 192, 256, OUT_LDS))
    s = build(launches, kernels)
    out = sys.argv[1] if len(sys.argv) > 1 else "k.s"
    open(out, "w").write(s)


if __name__ == "__main__":
    main()
```

```python
import sys; sys.path.insert(0,'dev')
from gen import *
kernels=[]; launches=[]
for i in range(6):
    n = "z%d_kernel"%i
    kernels.append(gen_zero(n)); launches.append((n, 95, 256, 0))
for i in range(5):
    launches.append(("z0_kernel", 95, 256, 0))
open('triv.s','w').write(build(launches,kernels))
```
